```python
import torch

def _softmax(x, axis=-1):
    return torch.softmax(x, dim=axis)
def _gelu(x):
    return torch.nn.functional.gelu(x, approximate="tanh")
def _silu(x):
    return torch.nn.functional.silu(x)
def _sigmoid(x):
    return torch.sigmoid(x)
def _layernorm(x, axis=-1, eps=1e-5):
    m = x.mean(dim=axis, keepdim=True)
    v = x.var(dim=axis, keepdim=True, unbiased=False)
    return (x - m) / torch.sqrt(v + eps)
def _scatter_add(tgt, idx, src, axis=0):
    return tgt.clone().index_add_(axis, idx, src)
def _segment_sum(src, seg, n):
    out = torch.zeros((n,) + src.shape[1:], dtype=src.dtype)
    return out.index_add_(0, seg, src)
def _pad(x, pw):
    flat = tuple(v for pair in reversed(pw) for v in pair)
    return torch.nn.functional.pad(x, flat)

kernel_name = 'concat_heads__sliding_block__ssm_conv_h3__prompt'

def setup_inputs():

    _w = (lambda a: (lambda t: t.to(torch.bfloat16) if t.is_floating_point() else t)(torch.as_tensor(a)))
    def _A_setup():
        B, S, D = 1, 2048, 576
        return {
            "x": _w((lambda *s: torch.randn(*s, dtype=torch.bfloat16) * 0.2)(B, S, D)),
            "wqkv": _w((lambda *s: torch.randn(*s, dtype=torch.bfloat16) * 0.2)(D, 3 * D)),
            "wo": _w((lambda *s: torch.randn(*s, dtype=torch.bfloat16) * 0.05)(D, D)),
        }
    _A_in = _A_setup()

    def _B_setup():
        B, S, D = 1, 2048, 576
        ks = 4
        return {
            "q": _w((lambda *s: torch.randn(*s, dtype=torch.bfloat16) * 0.05)(B, S, D)),
            "k": _w((lambda *s: torch.randn(*s, dtype=torch.bfloat16) * 0.8)(B, S, D)),
            "v": _w((lambda *s: torch.randn(*s, dtype=torch.bfloat16) * 0.8)(B, S, D)),
            "shift_k": _w((lambda *s: torch.randn(*s, dtype=torch.bfloat16) * 0.8)(D, ks) * 0.5),
            "ssm_k": _w((lambda *s: torch.randn(*s, dtype=torch.bfloat16) * 3.2)(D, S) * (1.0 / S ** 0.5)),
            "ssm_D": _w((lambda *s: torch.randn(*s, dtype=torch.bfloat16) * 0.8)(D)),
        }
    _B_in = _B_setup()

    return {
        "A_x": _A_in["x"],
        "A_wqkv": _A_in["wqkv"],
        "A_wo": _A_in["wo"],
        "B_q": _B_in["q"],
        "B_k": _B_in["k"],
        "B_v": _B_in["v"],
        "B_shift_k": _B_in["shift_k"],
        "B_ssm_k": _B_in["ssm_k"],
        "B_ssm_D": _B_in["ssm_D"],
    }

def reference(A_x, A_wqkv, A_wo, B_q, B_k, B_v, B_shift_k, B_ssm_k, B_ssm_D):
    def _A_ref(x, wqkv, wo):
        B, S, D = x.shape
        H = 32; Dh = D // H; W = 256
        qkv = (lambda x, *d: x.permute(*d))((x @ wqkv).reshape(B, S, 3, H, Dh), 2, 0, 3, 1, 4)
        q, k, v = qkv[0], qkv[1], qkv[2]
        scores = torch.einsum("bhqd,bhkd->bhqk", q, k) * (Dh ** -0.5)
        idx = torch.arange(S)
        mask = (idx[:, None] - idx[None, :] >= 0) & (idx[:, None] - idx[None, :] < W)
        scores = torch.where(mask[None, None], scores, -1e9)
        p = _softmax(scores, axis=-1)
        o = torch.einsum("bhqk,bhkd->bhqd", p, v)
        return (lambda x, *d: x.permute(*d))(o, 0, 2, 1, 3).reshape(B, S, D) @ wo

    def _B_ref(q, k, v, shift_k, ssm_k, ssm_D):
        B, S, D = q.shape
        ks = shift_k.shape[-1]
        k_pad = _pad(k, ((0, 0), (ks - 1, 0), (0, 0)))
        k_shift = torch.zeros_like(k)
        for t in range(ks):
            k_shift = k_shift + k_pad[:, t:t + S, :] * shift_k[:, ks - 1 - t][None, None, :]
        kv = k_shift * v
        L = 2 * S
        kv_pad = _pad(kv, ((0, 0), (0, S), (0, 0)))
        kf_pad = _pad(ssm_k, ((0, 0), (0, S)))
        kv_f = (lambda x, axes=(-2,-1): torch.fft.rfft2(x.float(), dim=axes))(kv_pad[:, None, :, :], axes=(1, 2))
        kf_f = (lambda x, axes=(-2,-1): torch.fft.rfft2(x.float(), dim=axes))(kf_pad[:, None, :], axes=(1, 2))
        kf_f = (lambda x, *d: x.permute(*d))(kf_f, 1, 2, 0)
        y_f = kv_f * kf_f[None, :, :, :]
        y = (lambda x, s, axes=(-2,-1): torch.fft.irfft2(x, s=s, dim=axes).to(torch.bfloat16))(y_f, (1, L), axes=(1, 2))[:, 0, :S, :]
        y = y + kv * ssm_D[None, None, :]
        return q * y

    a = _A_ref(A_x, A_wqkv, A_wo)
    b = _B_ref(B_q, B_k, B_v, B_shift_k, B_ssm_k, B_ssm_D)
    return torch.concatenate([a, b], axis=-1)
```

```python
import re

REG_RE = re.compile(r'\b([vsa])\[(\d+):(\d+)\]|\b([vsa])(\d+)\b|\b(vcc_lo|vcc_hi|vcc|exec_lo|exec_hi|exec|m0|scc)\b')

def regs_of(tok):
    out = []
    for m in REG_RE.finditer(tok):
        if m.group(1):
            out += [(m.group(1), i) for i in range(int(m.group(2)), int(m.group(3)) + 1)]
        elif m.group(4):
            out.append((m.group(4), int(m.group(5))))
        else:
            n = m.group(6)
            if n.startswith('vcc'): out.append(('x', 'vcc'))
            elif n.startswith('exec'): out.append(('x', 'exec'))
            else: out.append(('x', n))
    return out

TRANS = ('v_exp_f32', 'v_log_f32', 'v_rcp_f32', 'v_rsq_f32', 'v_sqrt_f32', 'v_sin_f32', 'v_cos_f32', 'v_rcp_iflag_f32',
         'v_exp_f16', 'v_rcp_f16')
S_NODST = ('s_cmp', 's_cbranch', 's_waitcnt', 's_barrier', 's_nop', 's_sleep', 's_setprio', 's_branch', 's_endpgm',
           's_bitcmp', 's_setreg', 's_sendmsg', 's_setpc')

class Inst:
    __slots__ = ('text', 'op', 'dst', 'src', 'kind', 'label', 'target', 'passes', 'srcC', 'srcAB', 'ws', 'wide', 'lds',
                 'comment', 'dpp', 'sdwa')
    def __init__(self, text):
        self.text = text
        code = text.split(';')[0].strip()
        self.label = None; self.target = None; self.passes = 0; self.srcC = []; self.srcAB = []
        self.dst = []; self.src = []; self.ws = 1; self.wide = False; self.lds = False; self.dpp = False; self.sdwa = False
        if code.endswith(':'):
            self.kind = 'label'; self.label = code[:-1]; self.op = ''; self.ws = 0; return
        if code == '' or code.startswith('.'):
            self.kind = 'dir'; self.op = ''; self.ws = 0; return
        parts = code.split(None, 1)
        op = parts[0]; self.op = op
        rest = parts[1] if len(parts) > 1 else ''
        ops = [o.strip() for o in re.split(r',(?![^\[]*\])', rest)] if rest else []
        base = re.sub(r'_(e32|e64|dpp|sdwa)$', '', op)
        self.dpp = op.endswith('_dpp') or ' row_' in code or 'quad_perm' in code or 'wave_' in code
        self.sdwa = op.endswith('_sdwa') or 'op_sel' in code
        R = regs_of
        if op.startswith('v_mfma'):
            self.kind = 'mfma'
            self.dst = R(ops[0]); self.srcAB = R(ops[1]) + R(ops[2]); self.srcC = R(ops[3].split()[0])
            self.src = self.srcAB + self.srcC
            self.passes = 8 if '32x32' in op else 4
        elif op.startswith('v_'):
            self.kind = 'trans' if base in TRANS else 'valu'
            if base.startswith('v_permlane') and 'swap' in base:
                self.dst = R(ops[0]) + R(ops[1]); self.src = list(self.dst)
            elif base.startswith('v_cmpx'):
                self.dst = R(ops[0]) + [('x', 'exec')]; self.src = sum((R(o) for o in ops[1:]), [])
            elif base in ('v_add_co_u32', 'v_sub_co_u32', 'v_addc_co_u32', 'v_subb_co_u32', 'v_subrev_co_u32', 'v_div_scale_f32', 'v_mad_u64_u32'):
                self.dst = R(ops[0]) + R(ops[1]); self.src = sum((R(o) for o in ops[2:]), [])
            elif base == 'v_nop':
                pass
            else:
                self.dst = R(ops[0]); self.src = sum((R(o) for o in ops[1:]), [])
                if base in ('v_fmac_f32', 'v_pk_fmac_f16', 'v_dot2c_f32_bf16', 'v_writelane_b32') or self.dpp or self.sdwa:
                    self.src += self.dst
        elif op.startswith('ds_'):
            self.kind = 'ds'
            if op.startswith('ds_read') or op.startswith('ds_bpermute') or op.startswith('ds_permute') or op.startswith('ds_swizzle') or '_rtn' in op:
                self.dst = R(ops[0]); self.src = sum((R(o) for o in ops[1:]), [])
            else:
                self.src = sum((R(o) for o in ops), [])
        elif op.startswith('buffer_') or op.startswith('global_'):
            self.kind = 'vmem'
            self.lds = bool(re.search(r'\blds\b', code)) or '_lds_' in op
            if op in ('buffer_wbl2', 'buffer_inv'):
                pass
            elif 'load' in op and not self.lds:
                self.dst = R(ops[0]); self.src = sum((R(o) for o in ops[1:]), [])
            elif 'atomic' in op and re.search(r'\bsc0\b', code):
                self.dst = R(ops[0]); self.src = sum((R(o) for o in ops), [])
            else:
                self.src = sum((R(o) for o in ops), [])
                if self.lds: self.src.append(('x', 'm0'))
                if 'store' in op and ('x3' in op or 'x4' in op):
                    self.wide = R(ops[0]) if op.startswith('buffer_') else R(ops[1])
        elif op.startswith('s_load') or op.startswith('s_memtime') or op.startswith('s_memrealtime') or op.startswith('s_buffer_load'):
            self.kind = 'smem'
            self.dst = R(ops[0]); self.src = sum((R(o) for o in ops[1:]), [])
        elif op.startswith('s_'):
            self.kind = 'salu'
            if op == 's_nop':
                self.ws = int(ops[0], 0) + 1
            elif op.startswith('s_cbranch') or op == 's_branch':
                self.target = ops[0]
                if 'vcc' in op: self.src = [('x', 'vcc')]
                if 'exec' in op: self.src = [('x', 'exec')]
            elif op.startswith(S_NODST):
                self.src = sum((R(o) for o in ops), [])
            else:
                self.dst = R(ops[0]); self.src = sum((R(o) for o in ops[1:]), [])
                if 'saveexec' in op: self.dst.append(('x', 'exec'))
        else:
            raise ValueError("unknown instruction: " + text)

def isvalu(i): return i.kind in ('valu', 'trans')
def vonly(rs): return set(r for r in rs if r[0] in 'va')
def sonly(rs): return set(r for r in rs if r[0] == 's' or r == ('x', 'vcc'))

def need(p, c):
    n = 0
    pd = set(p.dst);
    if isvalu(p):
        pv = vonly(pd); ps = sonly(pd)
        if c.kind == 'mfma' and pv & set(c.src): n = max(n, 2)
        if c.kind == 'mfma' and ('x', 'exec') in pd: n = max(n, 4)
        if isvalu(c):
            cb = c.op
            if pv & set(c.src):
                if p.kind == 'trans' and c.kind != 'trans': n = max(n, 1)
                if p.sdwa: n = max(n, 1)
                if cb.startswith('v_readlane') or cb.startswith('v_readfirstlane'): n = max(n, 1)
                if cb.startswith('v_permlane'): n = max(n, 2)
                if c.dpp: n = max(n, 2)
            if p.sdwa and pv & set(c.dst): n = max(n, 1)
            if ps & set(c.src):
                n = max(n, 2)
                if cb.startswith('v_readlane') or cb.startswith('v_writelane'): n = max(n, 4)
            if ('x', 'vcc') in pd and cb.startswith('v_div_fmas'): n = max(n, 4)
            if ('x', 'exec') in pd: n = max(n, 5)
        if c.kind == 'vmem' and ps & set(c.src): n = max(n, 5)
        if c.kind == 'salu' and c.op.startswith('s_cbranch_vcc') and ('x', 'vcc') in pd: n = max(n, 1)
    if p.kind == 'mfma':
        big = 12 if p.passes == 8 else 8
        ov = 10 if p.passes == 8 else 6
        if c.kind == 'mfma':
            if pd & set(c.srcAB): n = max(n, big)
            if pd & set(c.srcC):
                if not (c.srcC == p.dst and c.passes == p.passes): n = max(n, ov)
            if pd & set(c.dst) and not (c.srcC == p.dst and c.passes == p.passes) : n = max(n, ov)
        elif isvalu(c) or c.kind in ('vmem', 'ds'):
            if pd & (set(c.src) | set(c.dst)): n = max(n, big)
        if isvalu(c) and vonly(p.srcC) & set(c.dst): n = max(n, 7 if p.passes == 8 else 3)
    if p.kind == 'vmem' and p.wide:
        if set(p.wide) & set(c.dst): n = max(n, 2 if isvalu(c) else 1)
    if p.kind == 'salu' and ('x', 'm0') in pd:
        if (c.kind == 'vmem' and c.lds) or 'addtid' in c.op: n = max(n, 1)
    return n

MAXD = 13

class Asm:
    def __init__(self):
        self.ins = []
        self.nlab = 0
    def __call__(self, text):
        for line in text.split('\n'):
            line = line.strip()
            if not line: continue
            self.ins.append(Inst(line))
    def label(self, base='L'):
        self.nlab += 1
        return f"{base}_{self.nlab}"
    def fix_hazards(self):
        out = []
        for c in self.ins:
            if c.kind in ('label', 'dir'):
                out.append(c); continue
            dist = 0; req = 0
            for p in reversed(out):
                if p.kind in ('label', 'dir'): continue
                if p.op in ('s_branch', 's_endpgm', 's_setpc_b64'): break
                n = need(p, c)
                if n > dist: req = max(req, n - dist)
                dist += p.ws
                if dist >= MAXD: break
            while req > 0:
                k = min(req, 16)
                out.append(Inst(f"s_nop {k-1}")); req -= k
            out.append(c)
        self.ins = out
        idx = {i.label: n for n, i in enumerate(out) if i.kind == 'label'}
        errs = []
        for n, b in enumerate(out):
            if b.target is None: continue
            tail = []; d = 0; j = n
            while j >= 0 and d < MAXD:
                p = out[j]
                if p.kind not in ('label', 'dir'):
                    if j != n and p.op in ('s_branch', 's_endpgm'): break
                    tail.append(p); d += p.ws
                j -= 1
            j = idx[b.target]; dd = 0
            while j < len(out) and dd < MAXD:
                c = out[j]
                if c.kind not in ('label', 'dir'):
                    dist = dd
                    for p in tail:
                        if need(p, c) > dist: errs.append(f"edge hazard {p.text!r} -> {c.text!r} via {b.text!r} dist {dist}")
                        dist += p.ws
                    dd += c.ws
                    if c.op in ('s_branch', 's_endpgm'): break
                j += 1
        if errs: raise RuntimeError("\n".join(errs[:20]))
    def check_waits(self, entry=0, maxstates=200000):
        ins = self.ins
        idx = {i.label: n for n, i in enumerate(ins) if i.kind == 'label'}
        seen = {}
        stack = [(entry, (), (), frozenset())]
        errs = set(); steps = 0
        while stack:
            pc, vm, lg, sm = stack.pop()
            vm = list(vm); lg = list(lg); sm = set(sm)
            while pc < len(ins):
                c = ins[pc]; steps += 1
                if steps > 20000000: raise RuntimeError("check_waits too long")
                if c.kind == 'label':
                    key = (tuple(vm), tuple(lg), frozenset(sm))
                    s = seen.setdefault(pc, set())
                    if key in s: break
                    if len(s) > 12: break
                    s.add(key); pc += 1; continue
                if c.kind == 'dir': pc += 1; continue
                if c.op == 's_waitcnt':
                    m = re.search(r'vmcnt\((\d+)\)', c.text)
                    if m:
                        n = int(m.group(1)); vm = vm[len(vm) - n:] if n < len(vm) and n > 0 else ([] if n == 0 else vm)
                    m = re.search(r'lgkmcnt\((\d+)\)', c.text)
                    if m:
                        n = int(m.group(1))
                        if n == 0: lg = []; sm = set()
                        elif not sm: lg = lg[len(lg) - n:] if n < len(lg) else lg
                    pc += 1; continue
                touch = set(c.src) | set(c.dst)
                for q, nm in ((vm, 'vmem'), (lg, 'lds')):
                    for d in q:
                        if d and touch & d:
                            if c.kind == ('vmem' if nm == 'vmem' else 'ds') and not (set(c.src) & d): continue
                            errs.add(f"line {pc}: {c.text!r} touches pending {nm} load regs {sorted(touch & d)[:4]}")
                if touch & sm: errs.add(f"line {pc}: {c.text!r} touches pending smem regs")
                if c.kind == 'vmem':
                    vm.append(frozenset(c.dst))
                    if len(vm) > 63: vm = vm[-63:]
                    while vm and not vm[0]: vm.pop(0)
                elif c.kind == 'ds':
                    lg.append(frozenset(c.dst))
                    if len(lg) > 40: lg = lg[-40:]
                    while lg and not lg[0]: lg.pop(0)
                elif c.kind == 'smem':
                    sm |= set(c.dst)
                if c.op == 's_endpgm': break
                if c.target is not None:
                    stack.append((idx[c.target], tuple(vm), tuple(lg), frozenset(sm)))
                    if c.op == 's_branch': break
                pc += 1
        if errs: raise RuntimeError("\n".join(sorted(errs)[:30]))
    def maxregs(self):
        mv = ms = -1
        for i in self.ins:
            for r in list(i.dst) + list(i.src):
                if r[0] == 'v': mv = max(mv, r[1])
                if r[0] == 's': ms = max(ms, r[1])
        return mv + 1, ms + 1
    def text(self):
        return "\n".join((i.text if i.kind in ('label',) else "    " + i.text) for i in self.ins) + "\n"

def vr(a, n=1): return f"v{a}" if n == 1 else f"v[{a}:{a+n-1}]"
def sr(a, n=1): return f"s{a}" if n == 1 else f"s[{a}:{a+n-1}]"

def kernel_text(name, asm):
    return f".globl {name}\n.p2align 8\n.type {name},@function\n{name}:\n" + asm.text()

def descriptor(name, vgpr, sgpr):
    acc = (vgpr + 3) // 4 * 4
    return f""".p2align 6
.amdhsa_kernel {name}
  .amdhsa_next_free_vgpr {vgpr}
  .amdhsa_next_free_sgpr {sgpr}
  .amdhsa_accum_offset {acc}
  .amdhsa_group_segment_fixed_size 0
  .amdhsa_kernarg_size 96
  .amdhsa_user_sgpr_count 2
  .amdhsa_user_sgpr_kernarg_segment_ptr 1
  .amdhsa_system_sgpr_workgroup_id_x 1
.end_amdhsa_kernel
"""
```

```python
from asmlib import *
import math

WS_QKV = 0
WS_O   = 0x00A00000
WS_UT  = 0x00E00000
WS_YT  = 0x01200000
WS_FLAG = 0x01600000
WS_STAMP = 0x08000000
WS_SIZE = 0x10000000
PL = 32768

S_X, S_W, S_WO, S_Q, S_K, S_V, S_SH, S_H, S_D, S_OUT, S_DBG, S_WS = 4, 6, 8, 10, 12, 14, 16, 18, 20, 22, 24, 26
R_WS = 28
R_A = 32
R_B = 36
R_C = 40
S_WAVE = 44
S_TAG = 45
S_T = 46
S_MSK = 60
S_ROLE = 92

def srd(a, dst, ptr, nbytes):
    a(f"""s_mov_b32 s{dst}, s{ptr}
    s_mov_b32 s{dst+1}, s{ptr+1}
    s_mov_b32 s{dst+2}, {nbytes}
    s_mov_b32 s{dst+3}, 0x20000""")

def prologue(a, nwg, endlabel):
    a(f"""s_cmp_ge_u32 s2, {nwg}
    s_cbranch_scc1 {endlabel}
    s_load_dwordx16 s[4:19], s[0:1], 0
    s_load_dwordx8 s[20:27], s[0:1], 64
    v_lshrrev_b32 v1, 6, v0
    v_and_b32 v2, 63, v0
    v_readfirstlane_b32 s{S_WAVE}, v1
    s_mov_b32 s{S_TAG}, 0x12341234
    s_waitcnt lgkmcnt(0)""")
    srd(a, R_WS, S_WS, WS_SIZE)

A1_SLOT = 34816
A1_WOFF = 10240
def phase_a1(a, s_rb, s_cb, lds0=0, vb=4):
    vWd, vXd, vXe, vxa0, vxa1, vwa = vb, vb+1, vb+2, vb+3, vb+4, vb+5
    t = vb + 8
    acc = vb + 16
    fr = acc + 36
    assert acc % 4 == 0
    T = S_T
    srd(a, R_A, S_X, 2048*1152)
    srd(a, R_B, S_W, 576*3456)
    a(f"""
    v_lshrrev_b32 v{t}, 3, v2                     ; lane>>3
    v_and_b32 v{t+1}, 7, v2
    s_lshl_b32 s{T}, s{S_WAVE}, 3
    v_add_u32 v{t+2}, s{T}, v{t}
    v_and_b32 v{t+3}, 2, v{t+2}
    v_lshrrev_b32 v{t+4}, 1, v{t+2}
    v_and_b32 v{t+5}, 4, v{t+4}
    v_or_b32 v{t+3}, v{t+3}, v{t+5}               ; f(kr)
    v_xor_b32 v{t+3}, v{t+3}, v{t+1}
    v_mul_u32_u24 v{vWd}, 3456, v{t+2}
    v_lshl_add_u32 v{vWd}, v{t+3}, 4, v{vWd}
    s_mul_i32 s{T+1}, s{s_cb}, 384
    v_add_u32 v{vWd}, s{T+1}, v{vWd}
    v_and_b32 v{t+4}, 7, v{t+4}                   ; g(row)
    v_xor_b32 v{t+4}, v{t+4}, v{t+1}
    s_mul_i32 s{T+2}, s{s_rb}, 80
    v_add_u32 v{t+5}, s{T+2}, v{t+2}
    v_mul_u32_u24 v{vXd}, 1152, v{t+5}
    v_lshl_add_u32 v{vXd}, v{t+4}, 4, v{vXd}
    s_lshl_b32 s{T}, s{S_WAVE}, 1
    s_add_u32 s{T}, s{T}, 64
    v_add_u32 v{t+2}, s{T}, v{t}
    v_lshrrev_b32 v{t+4}, 1, v{t+2}
    v_and_b32 v{t+4}, 7, v{t+4}
    v_xor_b32 v{t+4}, v{t+4}, v{t+1}
    v_add_u32 v{t+5}, s{T+2}, v{t+2}
    v_mul_u32_u24 v{vXe}, 1152, v{t+5}
    v_lshl_add_u32 v{vXe}, v{t+4}, 4, v{vXe}
    s_lshl_b32 s{T+3}, s{S_WAVE}, 10              ; w*1024
    s_lshl_b32 s{T+4}, s{S_WAVE}, 8               ; w*256
    """)
    def issue(st):
        sb = lds0 + (st % 4) * A1_SLOT
        a(f"s_mov_b32 s{T+5}, {st*64*3456}\ns_mov_b32 s{T+6}, {st*128}")
        for l in range(3):
            a(f"s_add_u32 m0, s{T+3}, {sb + A1_WOFF + l*8192 - l*128}")
            a(f"buffer_load_dwordx4 v{vWd}, s[{R_B}:{R_B+3}], s{T+5} offen offset:{l*128} lds")
        a(f"s_add_u32 m0, s{T+3}, {sb}")
        a(f"buffer_load_dwordx4 v{vXd}, s[{R_A}:{R_A+3}], s{T+6} offen lds")
        a(f"s_add_u32 m0, s{T+4}, {sb + 8192}")
        a(f"s_mov_b64 exec, 0xffff")
        a(f"buffer_load_dwordx4 v{vXe}, s[{R_A}:{R_A+3}], s{T+6} offen lds")
        a(f"s_mov_b64 exec, -1")
    for st in range(4): issue(st)
    a(f"""
    v_and_b32 v{t}, 15, v2
    v_lshrrev_b32 v{t+1}, 4, v2                   ; kq
    s_lshr_b32 s{T}, s{S_WAVE}, 2
    s_mul_i32 s{T}, s{T}, {48*128}
    s_add_u32 s{T}, s{T}, {lds0}
    v_lshrrev_b32 v{t+2}, 1, v{t}
    v_xor_b32 v{t+2}, v{t+2}, v{t+1}
    v_lshlrev_b32 v{t+2}, 4, v{t+2}
    v_lshl_add_u32 v{vxa0}, v{t}, 7, v{t+2}
    v_add_u32 v{vxa0}, s{T}, v{vxa0}
    v_xor_b32 v{vxa1}, 64, v{vxa0}
    v_bfe_u32 v{t+2}, v2, 2, 2                    ; r
    v_lshl_add_u32 v{t+2}, v{t+1}, 3, v{t+2}      ; k
    v_and_b32 v{t+3}, 2, v{t+2}
    v_lshrrev_b32 v{t+4}, 1, v{t+2}
    v_and_b32 v{t+4}, 4, v{t+4}
    v_or_b32 v{t+3}, v{t+3}, v{t+4}               ; f(k)
    v_and_b32 v{t+4}, 3, v2
    v_mul_u32_u24 v{t+4}, 24, v{t+4}
    s_and_b32 s{T}, s{S_WAVE}, 3
    s_mul_i32 s{T}, s{T}, 96
    v_add_u32 v{t+4}, s{T}, v{t+4}                ; b0 = 96G + 24c
    v_lshlrev_b32 v{t+2}, 7, v{t+2}               ; k*128
    v_add_u32 v{t+2}, {lds0 + A1_WOFF}, v{t+2}
    """)
    assert lds0 % 128 == 0
    for tau in range(3):
        a(f"""
        v_add_u32 v{t+5}, {8*tau}, v{t+4}
        v_lshrrev_b32 v{t+6}, 7, v{t+5}
        v_lshl_add_u32 v{vwa+tau}, v{t+6}, 13, v{t+2}
        v_bfe_u32 v{t+6}, v{t+5}, 4, 3
        v_xor_b32 v{t+6}, v{t+6}, v{t+3}
        v_lshl_add_u32 v{vwa+tau}, v{t+6}, 4, v{vwa+tau}
        v_and_b32 v{t+6}, 8, v{t+5}
        v_add_u32 v{vwa+tau}, v{vwa+tau}, v{t+6}
        """)
    for i in range(36): a(f"v_mov_b32 v{acc+i}, 0")
    a(f"s_cmp_ge_u32 s{S_WAVE}, 4\ns_cselect_b32 s{T+7}, 1, 0")
    def body(nrt):
        def reads(ks):
            xb = fr + ks*24; wb = xb + 12
            for tau in range(3):
                a(f"ds_read_b64_tr_b16 v[{wb+4*tau}:{wb+4*tau+1}], v{vwa+tau} offset:{ks*4096}")
                a(f"ds_read_b64_tr_b16 v[{wb+4*tau+2}:{wb+4*tau+3}], v{vwa+tau} offset:{ks*4096+512}")
            for rt in range(nrt):
                a(f"ds_read_b128 v[{xb+4*rt}:{xb+4*rt+3}], v{vxa1 if ks else vxa0} offset:{rt*2048}")
        reads(0); reads(1)
        for ks in range(2):
            xb = fr + ks*24; wb = xb + 12
            for rt in range(nrt):
                a(f"s_waitcnt lgkmcnt({(1-ks)*(6+nrt) + nrt-1-rt})")
                for tau in range(3):
                    c = acc + (rt*3+tau)*4
                    a(f"v_mfma_f32_16x16x32_bf16 v[{c}:{c+3}], v[{wb+4*tau}:{wb+4*tau+3}], v[{xb+4*rt}:{xb+4*rt+3}], v[{c}:{c+3}]")
    for st in range(9):
        after = 3 if st == 0 else min(2, 8 - st)
        a(f"s_waitcnt vmcnt({5*after})\ns_barrier")
        if st >= 1 and st + 3 <= 8: issue(st + 3)
        l2 = a.label("A1two"); le = a.label("A1e")
        a(f"s_cmp_eq_u32 s{T+7}, 1\ns_cbranch_scc1 {l2}")
        body(3)
        a(f"s_branch {le}\n{l2}:")
        body(2)
        a(f"{le}:")
        if st < 8:
            d = A1_SLOT if st % 4 != 3 else -3*A1_SLOT
            for r in (vxa0, vxa1, vwa, vwa+1, vwa+2):
                a(f"v_add_u32 v{r}, {d & 0xffffffff}, v{r}")
    c = (18 ** -0.5) * math.log2(math.e)
    import struct
    cbits = struct.unpack('<I', struct.pack('<f', c))[0]
    lend = a.label("A1end")
    a(f"""
    s_cmp_lt_u32 s{s_cb}, 3
    s_cselect_b32 s{T}, {cbits:#x}, 1.0
    s_cmp_eq_u32 s{s_rb}, 25
    s_cselect_b32 s{T+1}, s{T+7}, 0
    s_cmp_eq_u32 s{T+1}, 1
    s_cbranch_scc1 {lend}
    s_lshl_b32 s{T+1}, s{s_cb}, 5
    s_and_b32 s{T+2}, s{S_WAVE}, 3
    s_lshl_b32 s{T+2}, s{T+2}, 3
    s_add_u32 s{T+1}, s{T+1}, s{T+2}
    s_lshl_b32 s{T+1}, s{T+1}, 15
    s_mul_i32 s{T+2}, s{s_rb}, {80*16}
    s_add_u32 s{T+1}, s{T+1}, s{T+2}
    s_mul_i32 s{T+2}, s{T+7}, {48*16}
    s_add_u32 s{T+1}, s{T+1}, s{T+2}
    s_add_u32 s{T+1}, s{T+1}, {WS_QKV}
    s_add_u32 s{T+2}, s{T+1}, {PL}
    v_lshrrev_b32 v{t}, 4, v2
    v_lshlrev_b32 v{t}, 16, v{t}
    v_and_b32 v{t+1}, 15, v2
    v_lshl_add_u32 v{t}, v{t+1}, 4, v{t}
    """)
    for rt in range(3):
        if rt == 2:
            a(f"s_cmp_eq_u32 s{T+7}, 1\ns_cbranch_scc1 {lend}")
        c0 = acc + rt*12
        o = fr + rt*8
        for i in range(12): a(f"v_mul_f32 v{c0+i}, s{T}, v{c0+i}")
        for i in range(6):
            a(f"v_cvt_pk_bf16_f32 v{o + i + (1 if i >= 3 else 0)}, v{c0+2*i}, v{c0+2*i+1}")
        a(f"v_mov_b32 v{o+3}, s{S_TAG}\nv_mov_b32 v{o+7}, s{S_TAG}")
        a(f"buffer_store_dwordx4 v[{o}:{o+3}], v{t}, s[{R_WS}:{R_WS+3}], s{T+1} offen offset:{rt*256} sc1")
        a(f"buffer_store_dwordx4 v[{o+4}:{o+7}], v{t}, s[{R_WS}:{R_WS+3}], s{T+2} offen offset:{rt*256} sc1")
    a(f"{lend}:")

def b_thread_map(a, vcq, vrg, t):
    a(f"""
    v_mul_u32_u24 v{t}, 3641, v0
    v_lshrrev_b32 v{vrg}, 16, v{t}
    v_mul_u32_u24 v{t}, 18, v{vrg}
    v_sub_u32 v{vcq}, v0, v{t}
    """)

def unpack(a, dlo, dhi, src):
    a(f"v_lshlrev_b32 v{dlo}, 16, v{src}\nv_and_b32 v{dhi}, 0xffff0000, v{src}")

def phase_b1(a, s_rbB, s_cB, lds0, vb=4):
    vcq, vrg, vo, vh, t = vb, vb+1, vb+2, vb+3, vb+4
    kr = vb + 8
    vv = kr + 14
    wr = vv + 8 + 2
    wr = (wr + 3) // 4 * 4
    kf = wr + 8
    wf = kf + 28
    uf = wf + 16
    vf = uf + 16
    pk = vf + 4
    T = S_T
    srd(a, R_A, S_K, 2048*1152)
    srd(a, R_B, S_V, 2048*1152)
    srd(a, R_C, S_SH, 576*8)
    b_thread_map(a, vcq, vrg, t)
    lskip = a.label("B1skip")
    a(f"""
    s_lshl_b32 s{T}, s{s_rbB}, 6
    v_lshl_add_u32 v{t}, v{vrg}, 2, s{T}          ; row0
    v_mul_u32_u24 v{vo}, 1152, v{t}
    s_mul_i32 s{T+1}, s{s_cB}, 144
    v_lshl_add_u32 v{vo}, v{vcq}, 3, v{vo}
    v_add_u32 v{vo}, s{T+1}, v{vo}
    v_subrev_u32 v{vh}, 3456, v{vo}
    v_cmp_eq_u32 vcc, 0, v{t}
    v_mov_b32 v{t+1}, 0x80000000
    v_cndmask_b32 v{vh}, v{vh}, v{t+1}, vcc
    s_mul_i32 s{T+2}, s{s_cB}, {72*8}
    v_lshlrev_b32 v{t+2}, 5, v{vcq}
    v_cmp_gt_u32 vcc, 288, v0
    s_and_saveexec_b64 s[{T+4}:{T+5}], vcc
    s_cbranch_execz {lskip}
    """)
    for i in range(3): a(f"buffer_load_dwordx2 v[{kr+2*i}:{kr+2*i+1}], v{vh}, s[{R_A}:{R_A+3}], 0 offen offset:{1152*i} nt")
    for i in range(4): a(f"buffer_load_dwordx2 v[{kr+6+2*i}:{kr+7+2*i}], v{vo}, s[{R_A}:{R_A+3}], 0 offen offset:{1152*i} nt")
    for i in range(4): a(f"buffer_load_dwordx2 v[{vv+2*i}:{vv+2*i+1}], v{vo}, s[{R_B}:{R_B+3}], 0 offen offset:{1152*i} nt")
    a(f"buffer_load_dwordx4 v[{wr}:{wr+3}], v{t+2}, s[{R_C}:{R_C+3}], s{T+2} offen")
    a(f"buffer_load_dwordx4 v[{wr+4}:{wr+7}], v{t+2}, s[{R_C}:{R_C+3}], s{T+2} offen offset:16")
    a("s_waitcnt vmcnt(0)")
    for i in range(14): unpack(a, kf+2*i, kf+2*i+1, kr+i)
    for ch in range(4):
        for h in range(2): unpack(a, wf+(2*h)*4+ch, wf+(2*h+1)*4+ch, wr+2*ch+h)
    for r in range(4):
        for cp in range(2):
            u = uf + r*4 + 2*cp
            for j in (3, 2, 1, 0):
                kk = kf + (r+3-j)*4 + 2*cp; w = wf + j*4 + 2*cp
                if j == 3: a(f"v_pk_mul_f32 v[{u}:{u+1}], v[{kk}:{kk+1}], v[{w}:{w+1}]")
                else: a(f"v_pk_fma_f32 v[{u}:{u+1}], v[{kk}:{kk+1}], v[{w}:{w+1}], v[{u}:{u+1}]")
            unpack(a, vf+2*cp, vf+2*cp+1, vv+2*r+cp)
            a(f"v_pk_mul_f32 v[{u}:{u+1}], v[{u}:{u+1}], v[{vf+2*cp}:{vf+2*cp+1}]")
    a(f"v_mul_u32_u24 v{t}, {4*144}, v{vcq}\nv_lshl_add_u32 v{t}, v{vrg}, 3, v{t}")
    for ch in range(4):
        a(f"v_cvt_pk_bf16_f32 v{pk+2*ch}, v{uf+ch}, v{uf+4+ch}")
        a(f"v_cvt_pk_bf16_f32 v{pk+2*ch+1}, v{uf+8+ch}, v{uf+12+ch}")
        a(f"ds_write_b64 v{t}, v[{pk+2*ch}:{pk+2*ch+1}] offset:{lds0 + ch*144}")
    a(f"""{lskip}:
    s_mov_b64 exec, s[{T+4}:{T+5}]
    s_waitcnt lgkmcnt(0)
    s_barrier
    v_lshrrev_b32 v{t}, 3, v0
    v_and_b32 v{t+1}, 7, v0
    v_mul_u32_u24 v{t+2}, 144, v{t}
    v_lshl_add_u32 v{t+2}, v{t+1}, 4, v{t+2}
    v_lshlrev_b32 v{t+3}, 12, v{t}
    v_lshl_add_u32 v{t+3}, v{t+1}, 4, v{t+3}
    s_mul_i32 s{T}, s{s_cB}, {72*4096}
    s_lshl_b32 s{T+1}, s{s_rbB}, 7
    s_add_u32 s{T}, s{T}, s{T+1}
    s_add_u32 s{T}, s{T}, {WS_UT}
    s_add_u32 s{T+1}, s{T}, {64*4096}
    ds_read_b128 v[{wr}:{wr+3}], v{t+2} offset:{lds0}
    ds_read_b128 v[{wr+4}:{wr+7}], v{t+2} offset:{lds0 + 64*144}
    s_waitcnt lgkmcnt(0)
    buffer_store_dwordx4 v[{wr}:{wr+3}], v{t+3}, s[{R_WS}:{R_WS+3}], s{T} offen sc1
    """)
    l2 = a.label("B1s2")
    a(f"""s_cmp_lg_u32 s{S_WAVE}, 0
    s_cbranch_scc1 {l2}
    buffer_store_dwordx4 v[{wr+4}:{wr+7}], v{t+3}, s[{R_WS}:{R_WS+3}], s{T+1} offen sc1
    {l2}:""")

H_PITCH = 4160
CV_H = 0
CV_U = 33280
CV_SIZE = CV_U + 2*4608
def phase_b2(a, s_ch, lds0, vb=4):
    t = vb
    d = vb + 8
    o = vb + 16
    uu = vb + 32
    T = S_T
    srd(a, R_A, S_H, 576*4096)
    a(f"""
    s_lshl_b32 s{T}, s{s_ch}, 12
    v_lshlrev_b32 v{t}, 4, v0
    v_and_b32 v{t+1}, 255, v0
    v_subrev_u32 v{t+2}, 8, v{t}
    v_cmp_eq_u32 vcc, 0, v{t+1}
    v_mov_b32 v{t+3}, 0x80000000
    v_cndmask_b32 v{t+2}, v{t+2}, v{t+3}, vcc
    buffer_load_dwordx4 v[{d+4}:{d+7}], v{t}, s[{R_A}:{R_A+3}], s{T} offen
    buffer_load_dwordx2 v[{d+2}:{d+3}], v{t+2}, s[{R_A}:{R_A+3}], s{T} offen
    s_add_u32 s{T+1}, s{T}, {WS_UT}
    buffer_load_dwordx4 v[{uu}:{uu+3}], v{t}, s[{R_WS}:{R_WS+3}], s{T+1} offen sc1
    v_lshrrev_b32 v{t+4}, 8, v0                   ; ch
    v_mul_u32_u24 v{t+5}, {4*H_PITCH}, v{t+4}
    v_lshlrev_b32 v{t+6}, 4, v{t+1}
    v_sub_u32 v{t+5}, v{t+5}, v{t+6}
    v_add_u32 v{t+5}, {lds0 + CV_H + 4080}, v{t+5}
    v_mul_u32_u24 v{t+7}, 4608, v{t+4}
    v_add_u32 v{t+7}, v{t+7}, v{t+6}
    s_mov_b32 s{T+2}, 0xffff
    v_mov_b32 v{o}, 0
    v_mov_b32 v{o+1}, 0
    v_mov_b32 v{o+2}, 0
    v_mov_b32 v{o+3}, 0
    v_lshrrev_b32 v{t+2}, 1, v{t+1}
    v_lshl_add_u32 v{t+2}, v{t+4}, 2, v{t+2}
    v_mul_u32_u24 v{t+2}, {H_PITCH}, v{t+2}
    v_and_b32 v{t+3}, 1, v0
    v_lshl_add_u32 v{t+2}, v{t+3}, 4, v{t+2}
    v_cmp_gt_u32 vcc, 32, v{t+1}
    s_mov_b64 exec, vcc
    ds_write_b128 v{t+7}, v[{o}:{o+3}] offset:{lds0 + CV_U}
    v_cmp_gt_u32 vcc, 8, v{t+1}
    s_mov_b64 exec, vcc
    ds_write_b128 v{t+2}, v[{o}:{o+3}] offset:{lds0 + CV_H + 4096}
    s_mov_b64 exec, -1
    s_waitcnt vmcnt(1)
    """)
    D = lambda n: d + 4 + n
    swap = lambda dst, n: a(f"v_alignbit_b32 v{dst}, v{D(n)}, v{D(n)}, 16")
    mix = lambda dst, n: a(f"v_bfi_b32 v{dst}, s{T+2}, v{D(n)}, v{D(n-1)}")
    for c in range(4):
        for i in range(4):
            n = 3 - i - (c >> 1)
            (swap if c % 2 == 0 else mix)(o + 4*c + i, n)
        a(f"ds_write_b128 v{t+5}, v[{o+4*c}:{o+4*c+3}] offset:{c*H_PITCH}")
    a(f"""s_waitcnt vmcnt(0)
    ds_write_b128 v{t+7}, v[{uu}:{uu+3}] offset:{lds0 + CV_U + 512}
    s_waitcnt lgkmcnt(0)
    s_barrier""")
    lend = a.label("B2end"); lh1 = a.label("B2h1")
    va, vbb = t, t+1
    acc = vb + 8
    fr = acc + 16
    a(f"""
    s_cmp_ge_u32 s{S_WAVE}, 4
    s_cbranch_scc1 {lend}
    s_lshr_b32 s{T+3}, s{S_WAVE}, 1
    v_and_b32 v{t+2}, 3, v2
    v_sub_u32 v{t+2}, 3, v{t+2}                   ; copy
    v_mul_u32_u24 v{va}, {H_PITCH}, v{t+2}
    v_bfe_u32 v{t+2}, v2, 2, 2
    v_lshlrev_b32 v{t+2}, 3, v{t+2}
    v_sub_u32 v{va}, v{va}, v{t+2}
    v_lshrrev_b32 v{t+3}, 4, v2
    v_lshlrev_b32 v{t+3}, 4, v{t+3}               ; 16q
    v_sub_u32 v{va}, v{va}, v{t+3}
    s_mul_i32 s{T+4}, s{T+3}, {4*H_PITCH}
    s_add_u32 s{T+4}, s{T+4}, {lds0 + CV_H + 72 + 448}
    v_add_u32 v{va}, s{T+4}, v{va}
    v_and_b32 v{t+2}, 15, v2
    v_lshlrev_b32 v{vbb}, 5, v{t+2}
    v_sub_u32 v{vbb}, v{vbb}, v{t+3}
    s_mul_i32 s{T+4}, s{T+3}, 4608
    s_add_u32 s{T+4}, s{T+4}, {lds0 + CV_U + 512 + 16}
    v_add_u32 v{vbb}, s{T+4}, v{vbb}
    """)
    for i in range(16): a(f"v_mov_b32 v{acc+i}, 0")
    a(f"s_bitcmp1_b32 s{S_WAVE}, 0\ns_cbranch_scc1 {lh1}")
    lst = a.label("B2st")
    def variant(tiles):
        n = max(tiles) + 1
        def reads(buf, back):
            for x in range(n):
                A = fr + buf*64 + 8*x
                a(f"ds_read_b64 v[{A}:{A+1}], v{va} offset:{512*(7-x)}")
                a(f"ds_read_b64 v[{A+2}:{A+3}], v{va} offset:{512*(7-x)+8}")
                a(f"ds_read_b128 v[{A+4}:{A+7}], v{vbb} offset:{512*x}")
            a(f"v_subrev_u32 v{va}, 64, v{va}\nv_subrev_u32 v{vbb}, 64, v{vbb}")
        def mm(buf):
            prs = [(ti, aa, tt - aa) for ti, tt in enumerate(tiles) for aa in range(tt + 1)]
            prs.sort(key=lambda p: (max(p[1], p[2]), p[0]))
            for ti, aa, bb in prs:
                A = fr + buf*64 + 8*aa; B = fr + buf*64 + 8*bb + 4; c = acc + 4*ti
                a(f"v_mfma_f32_16x16x32_bf16 v[{c}:{c+3}], v[{A}:{A+3}], v[{B}:{B+3}], v[{c}:{c+3}]")
        lp = a.label("B2lp")
        reads(0, 0)
        a(f"s_mov_b32 s{T+5}, 4\n{lp}:")
        a("s_waitcnt lgkmcnt(0)")
        reads(1, 0)
        mm(0)
        a("s_waitcnt lgkmcnt(0)")
        reads(0, 0)
        mm(1)
        a(f"s_sub_u32 s{T+5}, s{T+5}, 1\ns_cmp_lg_u32 s{T+5}, 0\ns_cbranch_scc1 {lp}")
        a("s_waitcnt lgkmcnt(0)")
        a(f"s_mov_b32 s{T+6}, {512*tiles[1]}\ns_mov_b32 s{T+7}, {512*tiles[3]}")
    variant([7, 6, 1, 0])
    a(f"s_branch {lst}\n{lh1}:")
    variant([5, 4, 3, 2])
    a(f"{lst}:")
    a(f"""
    s_nop 7
    v_lshrrev_b32 v{t+3}, 4, v2
    v_and_b32 v{t+4}, 1, v{t+3}
    v_sub_u32 v{t+4}, 1, v{t+4}
    v_lshlrev_b32 v{t+4}, 9, v{t+4}
    v_lshrrev_b32 v{t+3}, 1, v{t+3}
    v_lshl_add_u32 v{t+4}, v{t+3}, 4, v{t+4}
    v_lshl_add_u32 v{t+4}, v{t+2}, 5, v{t+4}      ; + 32*i
    s_add_u32 s{T+3}, s{T+3}, s{s_ch}
    s_lshl_b32 s{T+3}, s{T+3}, 12
    s_add_u32 s{T+3}, s{T+3}, {WS_YT}
    s_add_u32 s{T+6}, s{T+6}, s{T+3}
    s_add_u32 s{T+7}, s{T+7}, s{T+3}
    """)
    for p in range(2):
        q = fr + 4*p
        for i in range(4): a(f"v_cvt_pk_bf16_f32 v{q+i}, v{acc+8*p+2*i}, v{acc+8*p+2*i+1}")
        a(f"v_permlane16_swap_b32 v{q}, v{q+2}\nv_permlane16_swap_b32 v{q+1}, v{q+3}")
        a(f"buffer_store_dwordx4 v[{q}:{q+3}], v{t+4}, s[{R_WS}:{R_WS+3}], s{T+6+p} offen sc1")
    a(f"{lend}:")

KV_PITCH = 8256
AT_K = 0
AT_V = 3*KV_PITCH
AT_SIZE = 6*KV_PITCH
ONES = 0x3f803f80
def phase_a2_stage(a, s_rbk, s_head, lds0, vb=4):
    t = vb; st = vb + 4
    T = S_T
    lsk = a.label("A2sk")
    a(f"""
    v_lshlrev_b32 v{t}, 4, v0
    s_mul_i32 s{T}, s{s_head}, {3*PL}
    s_lshl_b32 s{T+1}, s{s_rbk}, 12
    s_add_u32 s{T}, s{T}, s{T+1}
    s_add_u32 s{T}, s{T}, {WS_QKV + 96*PL - 4096}
    s_cmp_eq_u32 s{s_rbk}, 0
    s_cselect_b32 s{T+1}, 4, 0
    s_cmp_lt_u32 s{S_WAVE}, s{T+1}
    s_cbranch_scc1 {lsk}
    """)
    for i in range(6):
        off = (i % 3)*PL + (i // 3)*96*PL
        a(f"s_add_u32 s{T+2}, s{T}, {off}")
        a(f"buffer_load_dwordx4 v[{st+4*i}:{st+4*i+3}], v{t}, s[{R_WS}:{R_WS+3}], s{T+2} offen sc1")
    for i in range(6):
        a(f"s_waitcnt vmcnt({5-i})")
        if i >= 3: a(f"v_mov_b32 v{st+4*i+3}, {ONES:#x}")
        a(f"ds_write_b128 v{t}, v[{st+4*i}:{st+4*i+3}] offset:{lds0 + i*KV_PITCH}")
    a(f"{lsk}:")

def phase_a2(a, s_rbk, s_head, lds0, vb=4):
    t = vb
    vka, vva, vm, vmt = vb+8, vb+9, vb+10, vb+11
    Q = vb + 12
    PM = Q + 8
    NEG = PM + 8
    O = NEG + 16
    S = [O + 16, O + 32]
    Kf = [O + 48, O + 56]
    Vf = [O + 64, O + 72]
    P = O + 80
    P2 = O + 88
    T = S_T
    sQB, sMODE, sCNT = T+8, T+9, T+10
    lane31, hh = t+6, t+7
    a(f"""
    v_and_b32 v{lane31}, 31, v2
    v_lshrrev_b32 v{hh}, 5, v2
    s_lshl_b32 s{sQB}, s{s_rbk}, 3
    s_add_u32 s{sQB}, s{sQB}, s{S_WAVE}
    ; Q loads
    s_mul_i32 s{T}, s{s_head}, {3*PL}
    s_lshl_b32 s{T+1}, s{sQB}, 9
    s_add_u32 s{T}, s{T}, s{T+1}
    s_add_u32 s{T+2}, s{T}, {WS_QKV}
    s_add_u32 s{T+3}, s{T}, {WS_QKV + 2*PL}
    v_lshlrev_b32 v{t}, 4, v{lane31}
    v_lshl_add_u32 v{t+1}, v{hh}, 15, v{t}
    buffer_load_dwordx4 v[{Q}:{Q+3}], v{t+1}, s[{R_WS}:{R_WS+3}], s{T+2} offen sc1
    buffer_load_dwordx4 v[{Q+4}:{Q+7}], v{t}, s[{R_WS}:{R_WS+3}], s{T+3} offen sc1
    s_lshl_b32 s{T+4}, s{S_WAVE}, 9
    v_mul_u32_u24 v{vka}, {KV_PITCH}, v{hh}
    v_add_u32 v{vka}, v{vka}, v{t}
    s_add_u32 s{T+5}, s{T+4}, {lds0 + AT_K}
    v_add_u32 v{vka}, s{T+5}, v{vka}
    v_add_u32 v{vmt}, s{T+5}, v{t}
    v_add_u32 v{t+2}, {2*KV_PITCH}, v{vmt}
    v_bfe_u32 v{t+3}, v2, 2, 2
    v_lshl_add_u32 v{t+3}, v{hh}, 2, v{t+3}
    v_lshlrev_b32 v{vva}, 4, v{t+3}
    v_and_b32 v{t+3}, 3, v2
    v_bfe_u32 v{t+4}, v2, 4, 1
    v_lshl_add_u32 v{t+3}, v{t+4}, 2, v{t+3}
    v_min_u32 v{t+3}, 5, v{t+3}
    v_lshrrev_b32 v{t+4}, 1, v{t+3}
    v_mul_u32_u24 v{t+4}, {KV_PITCH}, v{t+4}
    v_add_u32 v{vva}, v{vva}, v{t+4}
    v_and_b32 v{t+3}, 1, v{t+3}
    v_lshl_add_u32 v{vva}, v{t+3}, 3, v{vva}
    s_add_u32 s{T+5}, s{T+4}, {lds0 + AT_V}
    v_add_u32 v{vva}, s{T+5}, v{vva}
    v_lshlrev_b32 v{t+3}, 2, v{hh}
    v_sub_u32 v{t+3}, v{lane31}, v{t+3}
    v_mov_b32 v{t+4}, 0xffff
    """)
    for j in range(16):
        kk = 8*(j // 4) + j % 4
        a(f"v_cmp_le_i32 s[{S_MSK+2*j}:{S_MSK+2*j+1}], {kk}, v{t+3}")
    for i in range(8):
        a(f"v_cndmask_b32 v{PM+i}, 0, v{t+4}, s[{S_MSK+4*i}:{S_MSK+4*i+1}]")
        a(f"v_cndmask_b32 v{PM+i}, v{PM+i}, -1, s[{S_MSK+4*i+2}:{S_MSK+4*i+3}]")
    a(f"""
    s_waitcnt vmcnt(0)
    v_mov_b32 v{Q+3}, 0
    v_mov_b32 v{Q+7}, 0
    s_mov_b32 exec_lo, 0
    v_mov_b32 v{Q+4}, 0
    v_mov_b32 v{Q+5}, 0
    v_mov_b32 v{Q+6}, 0
    s_mov_b64 exec, -1
    s_mov_b32 s{sMODE}, 0
    s_waitcnt lgkmcnt(0)
    s_barrier
    """)
    vk2 = t + 2
    def rdK(b, s, ka=vka, k2=vk2):
        a(f"ds_read_b128 v[{Kf[b]}:{Kf[b]+3}], v{ka} offset:{512*s}")
        a(f"ds_read_b128 v[{Kf[b]+4}:{Kf[b]+7}], v{k2} offset:{512*s}")
    def rdV(b, s, va=vva):
        for i in range(4):
            a(f"ds_read_b64_tr_b16 v[{Vf[b]+2*i}:{Vf[b]+2*i+1}], v{va} offset:{512*s + 128*i}")
    def qk(sb, kb, cinit):
        a(f"v_mfma_f32_32x32x16_bf16 v[{S[sb]}:{S[sb]+15}], v[{Kf[kb]}:{Kf[kb]+3}], v[{Q}:{Q+3}], {cinit}")
        a(f"v_mfma_f32_32x32x16_bf16 v[{S[sb]}:{S[sb]+15}], v[{Kf[kb]+4}:{Kf[kb]+7}], v[{Q+4}:{Q+7}], v[{S[sb]}:{S[sb]+15}]")
    def pv(vb_, p, first=False):
        a(f"v_mfma_f32_32x32x16_bf16 v[{O}:{O+15}], v[{Vf[vb_]}:{Vf[vb_]+3}], v[{p}:{p+3}], {'0' if first else f'v[{O}:{O+15}]'}")
        a(f"v_mfma_f32_32x32x16_bf16 v[{O}:{O+15}], v[{Vf[vb_]+4}:{Vf[vb_]+7}], v[{p+4}:{p+7}], v[{O}:{O+15}]")
    def maxred(dst, sb, init=None):
        r = S[sb]
        if init is None:
            a(f"v_max3_f32 v{dst}, v{r}, v{r+1}, v{r+2}")
            for i in range(3, 15, 2): a(f"v_max3_f32 v{dst}, v{dst}, v{r+i}, v{r+i+1}")
            a(f"v_max_f32 v{dst}, v{dst}, v{r+15}")
        else:
            for i in range(0, 16, 2): a(f"v_max3_f32 v{dst}, v{dst}, v{r+i}, v{r+i+1}")
    def xhalf(reg, tmp):
        a(f"v_mov_b32 v{tmp}, v{reg}\nv_permlane32_swap_b32 v{tmp}, v{reg}\nv_max_f32 v{reg}, v{reg}, v{tmp}")
    lstart = a.label("A2start"); lnoold = a.label("A2noold"); lmrg = a.label("A2mrg"); lhave = a.label("A2have")
    lfin = a.label("A2fin"); lloop = a.label("A2loop"); lout = a.label("A2out"); lno2 = a.label("A2no2")
    wka, wk2, wva = t+3, t+4, t+5
    a(f"{lstart}:")
    rdK(0, 8); rdK(1, 0); rdV(0, 8); rdV(1, 0)
    a(f"""
    s_min_u32 s{sCNT}, s{sQB}, 7
    v_mov_b32 v{wka}, v{vka}
    v_mov_b32 v{wk2}, v{vk2}
    v_mov_b32 v{wva}, v{vva}
    s_waitcnt lgkmcnt(10)
    """)
    qk(0, 0, '0')
    a(f"s_cmp_lt_u32 s{sQB}, 8\ns_cbranch_scc1 {lnoold}\ns_waitcnt lgkmcnt(8)")
    qk(1, 1, '0')
    rdK(0, 7)
    a(f"s_nop 8\ns_branch {lmrg}\n{lnoold}:")
    rdK(0, 7)
    for j in range(16): a(f"v_mov_b32 v{S[1]+j}, 0xff800000")
    a(f"{lmrg}:")
    for j in range(16): a(f"v_cndmask_b32 v{S[0]+j}, v{S[1]+j}, v{S[0]+j}, s[{S_MSK+2*j}:{S_MSK+2*j+1}]")
    a(f"s_cmp_lg_u32 s{sMODE}, 0\ns_cbranch_scc1 {lhave}")
    maxred(vm, 0); xhalf(vm, vmt)
    a(f"{lhave}:")
    for j in range(16): a(f"v_sub_f32 v{NEG+j}, 0, v{vm}")
    a("s_waitcnt lgkmcnt(0)")
    qk(1, 0, f"v[{NEG}:{NEG+15}]")
    rdK(1, 6)
    for j in range(16): a(f"v_sub_f32 v{S[0]+j}, v{S[0]+j}, v{vm}")
    for j in range(16): a(f"v_exp_f32 v{S[0]+j}, v{S[0]+j}")
    for i in range(8): a(f"v_cvt_pk_bf16_f32 v{P2+i}, v{S[0]+2*i}, v{S[0]+2*i+1}")
    for i in range(8): a(f"v_and_b32 v{P+i}, v{P2+i}, v{PM+i}")
    for i in range(8): a(f"v_xor_b32 v{P2+i}, v{P2+i}, v{P+i}")
    pv(0, P, first=True)
    a(f"s_cmp_lt_u32 s{sQB}, 8\ns_cbranch_scc1 {lno2}")
    pv(1, P2)
    a(f"{lno2}:")
    rdV(1, 7)
    a(f"s_cmp_eq_u32 s{sCNT}, 0\ns_cbranch_scc1 {lfin}\n{lloop}:")
    for h in range(2):
        cur = 1 - h; nx = h; s = 7 - h
        a("s_waitcnt lgkmcnt(4)")
        qk(nx, cur, f"v[{NEG}:{NEG+15}]")
        rdK(nx, s-2, wka, wk2)
        for j in range(16): a(f"v_exp_f32 v{S[cur]+j}, v{S[cur]+j}")
        rdV(nx, s-1, wva)
        for i in range(8): a(f"v_cvt_pk_bf16_f32 v{P+i}, v{S[cur]+2*i}, v{S[cur]+2*i+1}")
        a("s_waitcnt lgkmcnt(6)")
        pv(cur, P)
        a(f"s_sub_u32 s{sCNT}, s{sCNT}, 1")
        if h == 0:
            a(f"s_cmp_eq_u32 s{sCNT}, 0\ns_cbranch_scc1 {lfin}")
        else:
            a(f"""v_subrev_u32 v{wka}, 1024, v{wka}
            v_subrev_u32 v{wk2}, 1024, v{wk2}
            v_subrev_u32 v{wva}, 1024, v{wva}
            s_cmp_lg_u32 s{sCNT}, 0
            s_cbranch_scc1 {lloop}""")
    a(f"{lfin}:\ns_waitcnt lgkmcnt(0)\ns_nop 11")
    a(f"v_mul_f32 v{t+3}, 0, v{O}")
    for j in range(1, 12): a(f"v_fmac_f32 v{t+3}, 0, v{O+j}" if False else f"v_fma_f32 v{t+3}, v{O+j}, 0, v{t+3}")
    a(f"""
    v_add_f32 v{t+3}, v{t+3}, v{O+14}
    v_rcp_f32 v{t+4}, v{O+14}
    v_cmp_nle_f32 vcc, v{t+3}, 0x4e800000
    """.replace(f"v_cmp_nle_f32 vcc, v{t+3}, 0x4e800000", f"v_cmp_nge_f32 vcc, 0x4e800000, v{t+3}"))
    a(f"""
    s_cbranch_vccz {lout}
    s_cmp_lg_u32 s{sMODE}, 0
    s_cbranch_scc1 {lout}
    s_mov_b32 s{sMODE}, 1
    s_min_u32 s{sCNT}, s{sQB}, 7
    v_mov_b32 v{wka}, v{vka}
    v_mov_b32 v{wk2}, v{vk2}
    s_cmp_eq_u32 s{sCNT}, 0
    s_cbranch_scc1 {lstart}
    """)
    lfb = a.label("A2fb")
    a(f"{lfb}:")
    rdK(0, 7, wka, wk2)
    a("s_waitcnt lgkmcnt(0)")
    qk(0, 0, '0')
    maxred(vm, 0, init=True)
    a(f"""v_subrev_u32 v{wka}, 512, v{wka}
    v_subrev_u32 v{wk2}, 512, v{wk2}
    s_sub_u32 s{sCNT}, s{sCNT}, 1
    s_cmp_lg_u32 s{sCNT}, 0
    s_cbranch_scc1 {lfb}""")
    xhalf(vm, vmt)
    a(f"s_branch {lstart}\n{lout}:")
    for j in range(12): a(f"v_mul_f32 v{O+j}, v{O+j}, v{t+4}")
    X = P
    a(f"""
    v_cvt_pk_bf16_f32 v{X}, v{O}, v{O+1}
    v_cvt_pk_bf16_f32 v{X+1}, v{O+2}, v{O+3}
    v_cvt_pk_bf16_f32 v{X+2}, v{O+4}, v{O+5}
    v_cvt_pk_bf16_f32 v{P2}, v{O+6}, v{O+7}
    v_cvt_pk_bf16_f32 v{X+4}, v{O+8}, v{O+9}
    v_cvt_pk_bf16_f32 v{X+5}, v{O+10}, v{O+11}
    v_mov_b32 v{X+3}, s{S_TAG}
    v_mov_b32 v{X+7}, s{S_TAG}
    v_permlane32_swap_b32 v{X}, v{X+2}
    v_permlane32_swap_b32 v{X+1}, v{P2}
    v_permlane32_swap_b32 v{X+4}, v{X+6}
    s_add_u32 s{T+2}, s{T}, {WS_O}
    s_add_u32 s{T+3}, s{T}, {WS_O + 2*PL}
    buffer_store_dwordx4 v[{X}:{X+3}], v{t+1}, s[{R_WS}:{R_WS+3}], s{T+2} offen sc1
    s_mov_b32 exec_hi, 0
    buffer_store_dwordx4 v[{X+4}:{X+7}], v{t}, s[{R_WS}:{R_WS+3}], s{T+3} offen sc1
    s_mov_b64 exec, -1
    """)

WO_SIZE = 616*144
def phase_a3_wo(a, s_cb8, lds0, vb=4):
    t = vb; T = S_T
    srd(a, R_A, S_WO, 576*1152)
    a(f"""
    v_mul_u32_u24 v{t}, 57, v2
    v_lshrrev_b32 v{t}, 9, v{t}                   ; lane/9
    v_mul_u32_u24 v{t+1}, 9, v{t}
    v_sub_u32 v{t+1}, v2, v{t+1}
    s_mul_i32 s{T}, s{S_WAVE}, 7
    v_add_u32 v{t}, s{T}, v{t}
    v_mul_u32_u24 v{t}, 1152, v{t}
    v_lshl_add_u32 v{t}, v{t+1}, 4, v{t}
    s_mul_i32 s{T}, s{s_cb8}, 144
    s_mul_i32 s{T+1}, s{S_WAVE}, 1008
    s_add_u32 s{T+1}, s{T+1}, {lds0}
    s_mov_b32 exec_hi, 0x7fffffff
    """)
    for r in range(11):
        a(f"s_add_u32 m0, s{T+1}, {r*56*144}\ns_add_u32 s{T+2}, s{T}, {r*56*1152}")
        a(f"buffer_load_dwordx4 v{t}, s[{R_A}:{R_A+3}], s{T+2} offen lds")
    a("s_mov_b64 exec, -1")

def phase_a3(a, s_rt64, s_cb8, lds_wo, lds_red, vb=4):
    t = vb
    Of = vb + 4
    acc = Of + 48
    Wf = acc + 20
    T = S_T
    srd(a, R_B, S_OUT, 2048*2304)
    a(f"""
    s_and_b32 s{T}, s{S_WAVE}, 3                  ; rt
    s_lshr_b32 s{T+1}, s{S_WAVE}, 2               ; kh
    v_lshrrev_b32 v{t}, 4, v2                     ; q
    v_and_b32 v{t+1}, 15, v2
    v_lshlrev_b32 v{t+2}, 15, v{t}
    v_lshl_add_u32 v{t+2}, v{t+1}, 4, v{t+2}
    s_lshl_b32 s{T+2}, s{s_rt64}, 10
    s_lshl_b32 s{T+3}, s{T}, 8
    s_add_u32 s{T+2}, s{T+2}, s{T+3}
    s_mul_i32 s{T+3}, s{T+1}, {48*PL}
    s_add_u32 s{T+2}, s{T+2}, s{T+3}
    s_add_u32 s{T+2}, s{T+2}, {WS_O}
    """)
    for ks in range(12):
        a(f"buffer_load_dwordx4 v[{Of+4*ks}:{Of+4*ks+3}], v{t+2}, s[{R_WS}:{R_WS+3}], s{T+2} offen sc1")
        if ks < 11: a(f"s_add_u32 s{T+2}, s{T+2}, {4*PL}")
    a(f"""
    v_mul_u32_u24 v{t+3}, 6, v{t}
    v_bfe_u32 v{t+2}, v2, 2, 2
    v_add_u32 v{t+3}, v{t+3}, v{t+2}
    v_mul_u32_u24 v{t+3}, 144, v{t+3}
    v_and_b32 v{t+2}, 3, v2
    v_lshl_add_u32 v{t+3}, v{t+2}, 3, v{t+3}
    s_mul_i32 s{T+3}, s{T+1}, {288*144}
    s_add_u32 s{T+3}, s{T+3}, {lds_wo}
    v_add_u32 v{t+3}, s{T+3}, v{t+3}
    s_waitcnt vmcnt(12)
    s_barrier
    """)
    def rd(ks):
        b = Wf + (ks % 2)*20
        for tau in range(5):
            off = ks*24*144 + tau*32
            a(f"ds_read_b64_tr_b16 v[{b+4*tau}:{b+4*tau+1}], v{t+3} offset:{off}")
            a(f"ds_read_b64_tr_b16 v[{b+4*tau+2}:{b+4*tau+3}], v{t+3} offset:{off+4*144}")
    rd(0)
    for ks in range(12):
        a("s_waitcnt lgkmcnt(0)")
        if ks < 11: rd(ks+1)
        a(f"s_waitcnt vmcnt({11-ks})")
        a(f"v_mov_b32 v{Of+4*ks+3}, 0")
        b = Wf + (ks % 2)*20
        for tau in range(5):
            c = acc + 4*tau
            a(f"v_mfma_f32_16x16x32_bf16 v[{c}:{c+3}], v[{b+4*tau}:{b+4*tau+3}], v[{Of+4*ks}:{Of+4*ks+3}], {'0' if ks == 0 else f'v[{c}:{c+3}]'}")
    l1 = a.label("A3k0"); le = a.label("A3e")
    a(f"""
    s_lshl_b32 s{T+3}, s{T}, 10
    s_mul_i32 s{T+3}, s{T+3}, 5
    v_lshlrev_b32 v{t+2}, 4, v2
    v_add_u32 v{t+2}, s{T+3}, v{t+2}
    s_cmp_eq_u32 s{T+1}, 0
    s_cbranch_scc1 {l1}
    s_nop 3
    """)
    for tau in range(5): a(f"ds_write_b128 v{t+2}, v[{acc+4*tau}:{acc+4*tau+3}] offset:{lds_red + tau*1024}")
    a(f"s_waitcnt lgkmcnt(0)\ns_barrier\ns_branch {le}\n{l1}:\ns_barrier")
    for tau in range(5): a(f"ds_read_b128 v[{Wf+4*tau}:{Wf+4*tau+3}], v{t+2} offset:{lds_red + tau*1024}")
    a(f"""
    s_lshl_b32 s{T+2}, s{s_rt64}, 6
    s_lshl_b32 s{T+3}, s{T}, 4
    s_add_u32 s{T+2}, s{T+2}, s{T+3}
    v_add_u32 v{t+1}, s{T+2}, v{t+1}
    v_mul_u32_u24 v{t+1}, 2304, v{t+1}
    v_and_b32 v{t+3}, 1, v{t}
    v_lshl_add_u32 v{t+1}, v{t+3}, 5, v{t+1}
    v_lshrrev_b32 v{t+3}, 1, v{t}
    v_lshl_add_u32 v{t+1}, v{t+3}, 4, v{t+1}
    s_mul_i32 s{T+2}, s{s_cb8}, 144
    s_waitcnt lgkmcnt(0)
    """)
    for i in range(20): a(f"v_add_f32 v{acc+i}, v{acc+i}, v{Wf+i}")
    for p in range(3):
        q = Of + 4*p
        for i in range(4 if p < 2 else 2): a(f"v_cvt_pk_bf16_f32 v{q+i}, v{acc+8*p+2*i}, v{acc+8*p+2*i+1}")
        a(f"v_permlane16_swap_b32 v{q}, v{q+2}\nv_permlane16_swap_b32 v{q+1}, v{q+3}")
        if p == 2: a("s_mov_b64 exec, 0xffff")
        a(f"buffer_store_dwordx4 v[{q}:{q+3}], v{t+1}, s[{R_B}:{R_B+3}], s{T+2} offen offset:{64*p}")
    a(f"s_mov_b64 exec, -1\n{le}:")

def phase_b3(a, s_rbB, s_cB, lds0, vb=4):
    vcq, vrg, vo, t = vb, vb+1, vb+2, vb+4
    ld = vb + 8
    qr = ld + 16
    dr = qr + 8
    df = dr + 2
    yr = df + 4
    ur = yr + 8
    f = ur + 8
    x = f + 16
    T = S_T
    U2 = 72*144
    srd(a, R_A, S_Q, 2048*1152)
    srd(a, R_B, S_OUT, 2048*2304)
    srd(a, R_C, S_D, 576*2)
    b_thread_map(a, vcq, vrg, t)
    a(f"""
    v_lshrrev_b32 v{t}, 3, v0
    v_and_b32 v{t+1}, 7, v0
    v_mul_u32_u24 v{t+2}, 144, v{t}
    v_lshl_add_u32 v{t+2}, v{t+1}, 4, v{t+2}
    v_lshlrev_b32 v{t+3}, 12, v{t}
    v_lshl_add_u32 v{t+3}, v{t+1}, 4, v{t+3}
    s_mul_i32 s{T}, s{s_cB}, {72*4096}
    s_lshl_b32 s{T+1}, s{s_rbB}, 7
    s_add_u32 s{T}, s{T}, s{T+1}
    s_add_u32 s{T+1}, s{T}, {WS_YT}
    s_add_u32 s{T+2}, s{T}, {WS_UT}
    buffer_load_dwordx4 v[{ld}:{ld+3}], v{t+3}, s[{R_WS}:{R_WS+3}], s{T+1} offen sc1
    buffer_load_dwordx4 v[{ld+4}:{ld+7}], v{t+3}, s[{R_WS}:{R_WS+3}], s{T+2} offen sc1
    """)
    l1 = a.label("B3a")
    a(f"""s_cmp_lg_u32 s{S_WAVE}, 0
    s_cbranch_scc1 {l1}
    s_add_u32 s{T+1}, s{T+1}, {64*4096}
    s_add_u32 s{T+2}, s{T+2}, {64*4096}
    buffer_load_dwordx4 v[{ld+8}:{ld+11}], v{t+3}, s[{R_WS}:{R_WS+3}], s{T+1} offen sc1
    buffer_load_dwordx4 v[{ld+12}:{ld+15}], v{t+3}, s[{R_WS}:{R_WS+3}], s{T+2} offen sc1
    s_waitcnt vmcnt(0)
    ds_write_b128 v{t+2}, v[{ld+8}:{ld+11}] offset:{lds0 + 64*144}
    ds_write_b128 v{t+2}, v[{ld+12}:{ld+15}] offset:{lds0 + U2 + 64*144}
    {l1}:
    s_waitcnt vmcnt(0)
    ds_write_b128 v{t+2}, v[{ld}:{ld+3}] offset:{lds0}
    ds_write_b128 v{t+2}, v[{ld+4}:{ld+7}] offset:{lds0 + U2}
    s_waitcnt lgkmcnt(0)
    s_barrier
    """)
    lskip = a.label("B3skip")
    a(f"""
    s_lshl_b32 s{T}, s{s_rbB}, 6
    v_lshl_add_u32 v{t}, v{vrg}, 2, s{T}          ; row0
    v_mul_u32_u24 v{vo}, 1152, v{t}
    s_mul_i32 s{T+1}, s{s_cB}, 144
    v_lshl_add_u32 v{t+1}, v{vcq}, 3, s{T+1}
    v_lshl_add_u32 v{t+3}, v{vo}, 1, v{t+1}
    v_add_u32 v{vo}, v{vo}, v{t+1}
    v_mul_u32_u24 v{t+2}, {4*144}, v{vcq}
    v_lshl_add_u32 v{t+2}, v{vrg}, 3, v{t+2}
    v_cmp_gt_u32 vcc, 288, v0
    s_and_saveexec_b64 s[{T+4}:{T+5}], vcc
    s_cbranch_execz {lskip}
    """)
    for i in range(4): a(f"buffer_load_dwordx2 v[{qr+2*i}:{qr+2*i+1}], v{vo}, s[{R_A}:{R_A+3}], 0 offen offset:{1152*i} nt")
    a(f"buffer_load_dwordx2 v[{dr}:{dr+1}], v{t+1}, s[{R_C}:{R_C+3}], 0 offen")
    for ch in range(4):
        a(f"ds_read_b64 v[{yr+2*ch}:{yr+2*ch+1}], v{t+2} offset:{lds0 + ch*144}")
        a(f"ds_read_b64 v[{ur+2*ch}:{ur+2*ch+1}], v{t+2} offset:{lds0 + U2 + ch*144}")
    a("s_waitcnt vmcnt(0) lgkmcnt(0)")
    unpack(a, df, df+1, dr); unpack(a, df+2, df+3, dr+1)
    for ch in range(4):
        for h in range(2):
            unpack(a, f+(2*h)*4+ch, f+(2*h+1)*4+ch, yr+2*ch+h)
            unpack(a, x, x+1, ur+2*ch+h)
            a(f"v_fmac_f32 v{f+(2*h)*4+ch}, v{x}, v{df+ch}\nv_fmac_f32 v{f+(2*h+1)*4+ch}, v{x+1}, v{df+ch}")
    a(f"s_mov_b32 s{T+6}, 1152\ns_mov_b32 s{T+7}, {1152+2*2304}")
    for r in range(4):
        for cp in range(2):
            unpack(a, x, x+1, qr+2*r+cp)
            a(f"v_pk_mul_f32 v[{x}:{x+1}], v[{x}:{x+1}], v[{f+4*r+2*cp}:{f+4*r+2*cp+1}]")
            a(f"v_cvt_pk_bf16_f32 v{ld+2*r+cp}, v{x}, v{x+1}")
        a(f"buffer_store_dwordx2 v[{ld+2*r}:{ld+2*r+1}], v{t+3}, s[{R_B}:{R_B+3}], s{T+6+r//2} offen offset:{2304*(r%2)}")
    a(f"{lskip}:\ns_mov_b64 exec, s[{T+4}:{T+5}]")
```

```python
from phases import *
import sys
HDR = open('concat_heads__sliding_block__ssm_conv_h3__prompt.s.ref').read().split('; Override launch')[0]
def finish(a):
    a.fix_hazards(); a.check_waits(); return a
R = S_ROLE
a = Asm(); a.nlab = 1000
prologue(a, 256, "K1end")
a(f"s_lshr_b32 s{R+2}, s2, 3\ns_and_b32 s{R+3}, s2, 7")
phase_b1(a, R+2, R+3, lds0=4*A1_SLOT - 0 if False else 0)
a(f"""s_barrier
s_cmp_ge_u32 s2, 234
s_cbranch_scc1 K1end
s_mul_i32 s{R}, s2, 7282
s_lshr_b32 s{R}, s{R}, 16
s_mul_i32 s{R+1}, s{R}, 9
s_sub_u32 s{R+1}, s2, s{R+1}
s_waitcnt vmcnt(0)""")
phase_a1(a, R, R+1)
a("K1end:\ns_endpgm")
k1 = finish(a)
a = Asm(); a.nlab = 2000
prologue(a, 256, "K2end")
a(f"s_lshr_b32 s{R}, s2, 5\ns_and_b32 s{R+1}, s2, 31\ns_lshl_b32 s{R+2}, s2, 1\nK2conv:")
phase_b2(a, R+2, lds0=0)
a(f"""s_barrier
s_cmp_ge_u32 s{R+2}, 64
s_cbranch_scc1 K2att
s_add_u32 s{R+2}, s{R+2}, 512
s_branch K2conv
K2att:""")
phase_a2_stage(a, R, R+1, lds0=0)
phase_a2(a, R, R+1, lds0=0)
a("K2end:\ns_endpgm")
k2 = finish(a)
a = Asm(); a.nlab = 3000
prologue(a, 256, "K3end")
a(f"s_lshr_b32 s{R}, s2, 3\ns_and_b32 s{R+1}, s2, 7")
phase_b3(a, R, R+1, lds0=0)
a("s_waitcnt vmcnt(0)\ns_barrier")
phase_a3_wo(a, R+1, lds0=24576)
phase_a3(a, R, R+1, lds_wo=24576, lds_red=0)
a("K3end:\ns_endpgm")
k3 = finish(a)
ks = [("k1_kernel", k1, 4*A1_SLOT), ("k2_kernel", k2, 65536), ("k3_kernel", k3, 24576+WO_SIZE)]
out = HDR
for n, k, lds in ks: out += f"; @launch kernel={n} grid=(256,1,1) block=(512,1,1) lds={lds}\n"
out += '.amdgcn_target "amdgcn-amd-amdhsa--gfx950"\n.text\n'
for n, k, lds in ks: out += kernel_text(n, k)
out += '.section .rodata,"a"\n'
for n, k, lds in ks:
    v, s = k.maxregs(); print(n, "vgpr", v, "sgpr", s, "ninst", len(k.ins))
    out += descriptor(n, v, 102)
open(sys.argv[1] if len(sys.argv) > 1 else 'v1.s', 'w').write(out)
```
